```python
import torch

def _softmax(x, axis=-1):
    return torch.softmax(x, dim=axis)
def _gelu(x):
    return torch.nn.functional.gelu(x, approximate="tanh")
def _silu(x):
    return torch.nn.functional.silu(x)
def _sigmoid(x):
    return torch.sigmoid(x)
def _layernorm(x, axis=-1, eps=1e-5):
    m = x.mean(dim=axis, keepdim=True)
    v = x.var(dim=axis, keepdim=True, unbiased=False)
    return (x - m) / torch.sqrt(v + eps)
def _scatter_add(tgt, idx, src, axis=0):
    return tgt.clone().index_add_(axis, idx, src)
def _segment_sum(src, seg, n):
    out = torch.zeros((n,) + src.shape[1:], dtype=src.dtype)
    return out.index_add_(0, seg, src)
def _pad(x, pw):
    flat = tuple(v for pair in reversed(pw) for v in pair)
    return torch.nn.functional.pad(x, flat)

kernel_name = 'recurrent_scan__compressed_kv_cla__dense_activation_gelu__decode'

def setup_inputs():

    _w = (lambda a: (lambda t: t.to(torch.bfloat16) if t.is_floating_point() else t)(torch.as_tensor(a)))
    def _A_setup():
        B, H, Sq, Sk, D, M = 4, 32, 1, 4096, 128, 512
        Dc = 4 * D
        return {
            "x": _w((lambda *s: torch.randn(*s, dtype=torch.bfloat16) * 0.1)(B, Sq, M)),
            "c_kv": _w((lambda *s: torch.randn(*s, dtype=torch.bfloat16) * 3.2)(B, Sk, Dc)),
            "w_q": _w((lambda *s: torch.randn(*s, dtype=torch.bfloat16) * 0.8)(M, H, D) * (M ** -0.5)),
            "w_uk": _w((lambda *s: torch.randn(*s, dtype=torch.bfloat16) * 0.8)(Dc, H, D) * (Dc ** -0.5)),
            "w_uv": _w((lambda *s: torch.randn(*s, dtype=torch.bfloat16) * 3.2)(Dc, H, D) * (Dc ** -0.5)),
            "w_o": _w((lambda *s: torch.randn(*s, dtype=torch.bfloat16) * 3.2)(H, D, M) * ((H * D) ** -0.5)),
        }
    _A_in = _A_setup()

    def _B_setup():
        B, S, D, F = 4, 1, 512, 1792
        return {
            "x": _w((lambda *s: torch.randn(*s, dtype=torch.bfloat16) * 0.1)(B, S, D)),
            "w1": _w((lambda *s: torch.randn(*s, dtype=torch.bfloat16) * 3.2)(D, F) * (D ** -0.5)),
            "b1": _w((lambda *s: torch.randn(*s, dtype=torch.bfloat16) * 3.2)(F) * 0.01),
            "w2": _w((lambda *s: torch.randn(*s, dtype=torch.bfloat16) * 3.2)(F, D) * (F ** -0.5)),
            "b2": _w((lambda *s: torch.randn(*s, dtype=torch.bfloat16) * 3.2)(D) * 0.01),
        }
    _B_in = _B_setup()

    return {
        "A_x": _A_in["x"],
        "A_c_kv": _A_in["c_kv"],
        "A_w_q": _A_in["w_q"],
        "A_w_uk": _A_in["w_uk"],
        "A_w_uv": _A_in["w_uv"],
        "A_w_o": _A_in["w_o"],
        "B_x": _B_in["x"],
        "B_w1": _B_in["w1"],
        "B_b1": _B_in["b1"],
        "B_w2": _B_in["w2"],
        "B_b2": _B_in["b2"],
    }

def reference(A_x, A_c_kv, A_w_q, A_w_uk, A_w_uv, A_w_o, B_x, B_w1, B_b1, B_w2, B_b2):
    def _A_ref(x, c_kv, w_q, w_uk, w_uv, w_o):
        B, Sq, M = x.shape[0], x.shape[1], x.shape[2]
        Sk = c_kv.shape[1]
        H, D = w_q.shape[1], w_q.shape[2]
        q = torch.einsum("bqm,mhd->bhqd", x, w_q)
        k = torch.einsum("bkc,chd->bhkd", c_kv, w_uk)
        v = torch.einsum("bkc,chd->bhkd", c_kv, w_uv)
        scores = torch.einsum("bhqd,bhkd->bhqk", q, k) * (D ** -0.5)
        off = Sk - Sq
        qi = torch.arange(Sq)[:, None]
        kj = torch.arange(Sk)[None, :]
        cmask = kj <= (qi + off)
        scores = torch.where(cmask[None, None], scores, -1e9)
        p = _softmax(scores, axis=-1)
        ctx = torch.einsum("bhqk,bhkd->bhqd", p, v)
        return torch.einsum("bhqd,hdm->bqm", ctx, w_o)

    def _B_ref(x, w1, b1, w2, b2):
        h = torch.einsum("bsd,df->bsf", x, w1) + b1
        h = _gelu(h)
        return torch.einsum("bsf,fd->bsd", h, w2) + b2

    x = A_x
    xn = _layernorm(x, axis=-1)
    s = _A_ref(xn, A_c_kv, A_w_q, A_w_uk, A_w_uv, A_w_o)
    g = _silu(_B_ref(xn, B_w1, B_b1, B_w2, B_b2))
    return x + s * g
```

```python
import re

TRANS = ('v_exp_f32', 'v_log_f32', 'v_rcp_f32', 'v_rsq_f32', 'v_sqrt_f32', 'v_sin_f32', 'v_cos_f32')
RMW = ('v_fmac_f32', 'v_dot2c_f32_bf16', 'v_writelane_b32')

def regs_of(op):
    op = op.strip()
    op = re.sub(r'^-', '', op)
    m = re.match(r'^abs\((.*)\)$', op) or re.match(r'^\|(.*)\|$', op)
    if m: op = m.group(1)
    m = re.match(r'^([vsa])(\d+)$', op)
    if m: return {(m.group(1), int(m.group(2)))}
    m = re.match(r'^([vsa])\[(\d+):(\d+)\]$', op)
    if m: return {(m.group(1), i) for i in range(int(m.group(2)), int(m.group(3)) + 1)}
    if op == 'vcc': return {('s', 106), ('s', 107)}
    if op == 'vcc_lo': return {('s', 106)}
    if op == 'vcc_hi': return {('s', 107)}
    if op == 'exec': return {('s', 126), ('s', 127)}
    if op == 'm0': return {('s', 124)}
    return set()

class Ins:
    def __init__(self, text):
        self.text = text
        t = text.split(';')[0].strip()
        self.label = t.endswith(':')
        self.mn = t.split()[0] if t else ''
        rest = t[len(self.mn):].strip()
        ops = []
        cur = ''; depth = 0
        for ch in rest:
            if ch in '[(': depth += 1
            if ch in '])': depth -= 1
            if ch == ',' and depth == 0:
                ops.append(cur.strip()); cur = ''
            else:
                cur += ch
        if cur.strip(): ops.append(cur.strip())
        mods = ''
        if ops:
            last = ops[-1].split()
            ops[-1] = last[0] if last else ''
            mods = ' '.join(last[1:])
        self.ops = ops; self.mods = mods
        mn = self.mn
        base = re.sub(r'_(e32|e64|dpp|sdwa)$', '', mn)
        self.base = base
        self.valu = mn.startswith('v_') and not mn.startswith('v_mfma')
        self.mfma = mn.startswith('v_mfma')
        self.trans = base in TRANS
        self.dot = base.startswith('v_dot')
        self.dpp = mn.endswith('_dpp') or 'row_' in mods or 'quad_perm' in mods
        self.perml = base.startswith('v_permlane')
        self.rdlane = base in ('v_readlane_b32', 'v_readfirstlane_b32')
        self.vmem = mn.startswith('buffer_') or mn.startswith('global_')
        self.ds = mn.startswith('ds_')
        self.salu = mn.startswith('s_')
        self.branch = mn.startswith('s_cbranch') or mn == 's_branch' or mn == 's_endpgm' or mn == 's_barrier' and False
        self.w = set(); self.r = set()
        self.srcC = set(); self.srcAB = set(); self.stdata = set()
        self.ws = 1
        if mn == 's_nop': self.ws = int(ops[0], 0) + 1
        R = [regs_of(o) for o in ops]
        if self.label or not mn: return
        if self.mfma:
            self.w = R[0]; self.srcAB = R[1] | R[2]; self.srcC = R[3]; self.r = self.srcAB | self.srcC
            self.passes = 8 if '32x32' in mn else 4
        elif self.perml:
            self.w = R[0] | R[1]; self.r = R[0] | R[1]
        elif self.valu:
            self.w = set(R[0])
            srcs = R[1:]
            if base in ('v_add_co_u32', 'v_addc_co_u32', 'v_sub_co_u32'):
                self.w |= R[1]; srcs = R[2:]
            for s in srcs: self.r |= s
            if base in RMW or self.dpp: self.r |= R[0]
            if base == 'v_cndmask_b32' and len(ops) == 3: self.r |= regs_of('vcc')
        elif self.vmem:
            lds = 'lds' in mods.split()
            self.ldsdma = lds
            if 'load' in mn:
                if lds:
                    for s in R: self.r |= s
                    self.r |= regs_of('m0')
                else:
                    self.w = R[0]
                    for s in R[1:]: self.r |= s
            else:
                for s in R: self.r |= s
                if 'x3' in mn or 'x4' in mn: self.stdata = R[0]
        elif self.ds:
            if 'read' in mn or 'bpermute' in mn or 'swizzle' in mn or 'rtn' in mn:
                self.w = R[0]
                for s in R[1:]: self.r |= s
            else:
                for s in R: self.r |= s
        elif self.salu:
            if mn.startswith('s_cmp') or mn.startswith('s_cbranch') or mn in ('s_waitcnt', 's_barrier', 's_nop', 's_sleep', 's_branch', 's_endpgm', 's_setprio'):
                for s in R: self.r |= s
            else:
                self.w = R[0] if R else set()
                for s in R[1:]: self.r |= s

def need(p, c):
    n = 0
    vw = {x for x in p.w if x[0] in 'va'}
    sw = {x for x in p.w if x[0] == 's'}
    if p.valu:
        if c.mfma and vw & c.r: n = max(n, 3 if p.dot else 2)
        if c.dpp and vw & c.r: n = max(n, 2)
        if c.perml and vw & c.r: n = max(n, 2)
        if c.rdlane and vw & c.r: n = max(n, 1)
        if p.trans and c.valu and not c.trans and vw & c.r: n = max(n, 1)
        if p.trans and (c.vmem or c.ds) and vw & c.r: n = max(n, 1)
        if p.dot and (c.valu or c.vmem or c.ds) and vw & (c.r | c.w):
            same = c.base == p.base
            if same:
                srcs = set()
                for o in c.ops[1:3]: srcs |= regs_of(o)
                if vw & srcs: n = max(n, 3)
            else:
                n = max(n, 3)
        if sw:
            if c.valu and sw & c.r: n = max(n, 4 if c.base in ('v_readlane_b32', 'v_writelane_b32') else 2)
            if c.vmem and sw & c.r: n = max(n, 5)
            if c.salu and sw & c.r: n = max(n, 1)
            if ('s', 126) in sw and (c.dpp or c.mfma or c.perml or c.rdlane): n = max(n, 5)
    if p.mfma:
        big = p.passes == 8
        if c.mfma:
            if vw & c.srcAB: n = max(n, 12 if big else 8)
            if vw & c.srcC and c.srcC != vw: n = max(n, 10 if big else 6)
            if vw & c.srcC and c.srcC == vw and c.passes != p.passes: n = max(n, 10 if big else 6)
        elif (c.valu or c.vmem or c.ds) and vw & (c.r | c.w): n = max(n, 12 if big else 8)
        if c.valu and p.srcC & c.w: n = max(n, 7 if big else 3)
    if p.vmem and p.stdata and (c.valu or c.mfma) and p.stdata & c.w: n = max(n, 2)
    if p.vmem and p.stdata and (c.vmem or c.ds) and p.stdata & c.w: n = max(n, 1)
    if p.salu and ('s', 124) in p.w and c.vmem and getattr(c, 'ldsdma', False): n = max(n, 1)
    return n

def worst(p):
    if p.mfma: return 12 if p.passes == 8 else 8
    if p.valu:
        if any(x[0] == 's' for x in p.w): return 5
        return 3 if p.dot else 2
    if p.vmem and p.stdata: return 2
    if p.salu and ('s', 124) in p.w: return 1
    return 0

class Asm:
    def __init__(self):
        self.raw = []
    def __call__(self, s):
        for x in s.strip('\n').split('\n'):
            x = x.strip()
            if x: self.raw.append(x)
    def finish(self):
        out = []
        hist = []
        npad = 0
        def dist_pad(c):
            d = 0; pad = 0
            for p in reversed(hist):
                k = need(p, c) if c is not None else worst(p)
                if k - d > pad: pad = k - d
                d += p.ws
                if d > 20: break
            return pad
        for t in self.raw:
            if t.startswith(';') or t.startswith('.'):
                out.append(t); continue
            c = Ins(t)
            if c.label or c.branch:
                pad = dist_pad(None)
                if c.mn == 's_endpgm': pad = 0
                if c.branch and pad > 0: pad -= 1
            else:
                pad = dist_pad(c)
            while pad > 0:
                k = min(pad, 16)
                nop = Ins(f's_nop {k-1}')
                out.append(nop.text); hist.append(nop); pad -= k; npad += 1
            out.append(t)
            if c.label: hist = []
            else: hist.append(c)
        self.npad = npad
        return '\n'.join(('    ' + x if not x.endswith(':') else x) for x in out) + '\n'
```

```python
KN = 'recurrent_scan__compressed_kv_cla__dense_activation_gelu__decode'
HDR = open('cdna_kernels/' + KN + '.s.ref').read().split('; Override launch')[0]

class Asm:
    def __init__(self):
        self.l = []
    def __call__(self, s):
        for x in s.strip('\n').split('\n'):
            self.l.append('    ' + x.strip() if not x.strip().endswith(':') else x.strip())
    def text(self):
        return '\n'.join(self.l) + '\n'

def kernel_text(name, body, vgpr, sgpr=102, accum=None):
    if accum is None:
        accum = (vgpr + 3) // 4 * 4
    return f""".text
.globl {name}
.p2align 8
.type {name},@function
{name}:
{body}.section .rodata,"a"
.p2align 6
.amdhsa_kernel {name}
  .amdhsa_next_free_vgpr {vgpr}
  .amdhsa_next_free_sgpr {sgpr}
  .amdhsa_accum_offset {accum}
  .amdhsa_group_segment_fixed_size 0
  .amdhsa_kernarg_size 112
  .amdhsa_user_sgpr_count 2
  .amdhsa_user_sgpr_kernarg_segment_ptr 1
  .amdhsa_system_sgpr_workgroup_id_x 1
.end_amdhsa_kernel
"""

def file_text(launches, kernels):
    s = HDR
    for (k, g, b, lds) in launches:
        if k is None:
            s += f"; @launch grid=({g},1,1) block=({b},1,1) lds={lds}\n"
        else:
            s += f"; @launch kernel={k} grid=({g},1,1) block=({b},1,1) lds={lds}\n"
    s += '.amdgcn_target "amdgcn-amd-amdhsa--gfx950"\n'
    for k in kernels:
        s += k
    return s

SIZES = [4096, 16 << 20, 4 << 20, 4 << 20, 4 << 20, 4 << 20, 4096, 512 * 1792 * 2, 3584, 1792 * 512 * 2, 1024, 4096, 256, 256 << 20]
```

```python
import sys
from gen_common import KN, HDR, SIZES, kernel_text, file_text
from asmlib import Asm

H1 = 0x10000; HM = 0x70000; H35 = 0xA0000; H2 = 0x100000; H4 = 0x140000; H3 = 0x200000; STAMP = 0x900000
QA = 131072; PB = 147456; ST = PB + 4096; SL = ST + 512; CT = SL + 512
LDS = 163840
TAGK = 0x9e3779b1
P = lambda slot: 16 + 2 * slot
SC = 128 ** -0.5 * 1.4426950408889634
import struct
def f32(x): return '0x%08x' % struct.unpack('<I', struct.pack('<f', x))[0]

class G:
    def __init__(s, stamps=False, thr=4, nt_w=False, nt_kv=False, spin=100000, sleep=4):
        s.a = Asm(); s.stamps = stamps; s.thr = thr; s.ntw = ' nt' if nt_w else ''; s.ntkv = ' nt' if nt_kv else ''
        s.spin = spin; s.sleep = sleep; s.nl = 0
    def lab(s, p):
        s.nl += 1
        return f'L_{p}{s.nl}'
    def stamp(s, k):
        if s.stamps:
            s.a(f's_memrealtime s[{72+2*k}:{73+2*k}]\ns_waitcnt lgkmcnt(0)')
    def srd(s, r, slot):
        s.a(f"""
        s_mov_b32 s{r}, s{P(slot)}
        s_and_b32 s{r+1}, s{P(slot)+1}, 0xffff
        s_mov_b32 s{r+2}, {SIZES[slot]}
        s_mov_b32 s{r+3}, 0x20000""")
    def end(s):
        a = s.a
        if s.stamps:
            a(f"""
            s_mov_b64 exec, -1
            s_memrealtime s[98:99]
            s_lshl_b32 s4, s2, 3
            s_add_u32 s4, s4, s3
            s_lshl_b32 s4, s4, 7
            s_add_u32 s4, s4, {STAMP}
            v_mov_b32 v4, 0
            s_waitcnt lgkmcnt(0)""")
            for k in range(14):
                a(f'v_writelane_b32 v4, s{72+2*k}, {k}')
            a("""
            v_lshlrev_b32 v3, 2, v0
            s_mov_b64 exec, 0xffff
            buffer_store_dword v4, v3, s[44:47], s4 offen
            s_waitcnt vmcnt(0)""")
        a('s_endpgm')
    def tagcheck(s, regs, acc):
        a = s.a
        a(f'v_xor_b32 v{acc}, s12, v{regs[0]}')
        for r in regs[1:]:
            a(f'v_bitop3_b32 v{acc}, v{acc}, v{r}, s12 bitop3:0xf6')
        a(f'v_cmp_ne_u32 vcc, 0, v{acc}')
    def poll(s, loads, tags, acc, first_issued=False, pre_wait=None):
        a = s.a
        top = s.lab('poll'); chk = s.lab('chk'); done = s.lab('done')
        a('s_mov_b32 s13, 0')
        if first_issued:
            a(f's_branch {chk}')
        a(f'{top}:')
        for l in loads: a(l)
        a(f'{chk}:')
        a('s_waitcnt vmcnt(0)')
        s.tagcheck(tags, acc)
        a(f"""
        s_cbranch_vccz {done}
        s_add_u32 s13, s13, 1
        s_cmp_ge_u32 s13, {s.spin}
        s_cbranch_scc1 {done}
        s_sleep {s.sleep}
        s_branch {top}
        {done}:""")
    def gather8(s, vb, voff, soff_expr):
        a = s.a
        a(soff_expr)
        a('s_add_u32 s7, s6, 6144')
        loads = []
        for sg in range(2):
            for i in range(6):
                r = vb + 24 * sg + 4 * i
                loads.append(f'buffer_load_dwordx4 v[{r}:{r+3}], v{voff}, s[44:47], s{6+sg} offen offset:{256*i} sc1')
        tags = [vb + 4 * k + 3 for k in range(12)]
        s.poll(loads, tags, 14)
        for sg in range(2):
            b = vb + 24 * sg
            for ks in range(3): a(f'v_mov_b32 v{b+4*ks+3}, v{b+16+ks}')
            a(f'v_mov_b32 v{b+15}, v{b+20}')
    def gather8_voff(s, v):
        s.a(f"""
        v_lshrrev_b32 v{v}, 2, v1
        v_mul_u32_u24 v{v}, 1536, v{v}
        v_lshl_add_u32 v{v}, v2, 6, v{v}
        v_and_b32 v14, 3, v1
        v_lshl_add_u32 v{v}, v14, 4, v{v}""")
    def publish_h1(s, vd, vs):
        a = s.a
        for r in range(4):
            for e in range(4):
                dst = vs + 4 * r + e if e < 3 else (vs + 16 + r if r < 3 else vs + 20)
                a(f'v_cvt_pk_bf16_f32 v{dst}, v{vd+8*e+r}, v{vd+8*e+4+r}')
        a(f"""
        v_lshlrev_b32 v14, 6, v2
        v_lshl_add_u32 v14, v1, 4, v14
        s_mov_b32 s8, 0x000f000f
        s_mov_b32 s9, 0x000f000f
        s_mov_b64 exec, s[8:9]""")
        for i in range(6):
            a(f'buffer_store_dwordx4 v[{vs+4*i}:{vs+4*i+3}], v14, s[44:47], s6 offen offset:{256*i} sc1')
        a('s_mov_b64 exec, -1')
    def settags(s, vs, n):
        for i in range(n): s.a(f'v_mov_b32 v{vs+4*i+3}, s12')
    def perms8(s, raw, out):
        for jj in range(8):
            for t in range(4):
                s.a(f'v_perm_b32 v{out+4*jj+t}, v{raw+4*(2*t+1)+(jj>>1)}, v{raw+4*(2*t)+(jj>>1)}, s{10+(jj&1)}')
    def perms4(s, raw, out):
        for jj in range(4):
            for t in range(4):
                s.a(f'v_perm_b32 v{out+4*jj+t}, v{raw+2*(2*t+1)+(jj>>1)}, v{raw+2*(2*t)+(jj>>1)}, s{10+(jj&1)}')
    def wloads(s, raw, stride, srd, nt):
        a = s.a
        for Gi in range(2):
            for i in range(8):
                r = raw + 4 * (8 * Gi + i)
                a(f'buffer_load_dwordx4 v[{r}:{r+3}], v5, s[{srd}:{srd+3}], s5 offen{nt}')
                if not (Gi == 1 and i == 7):
                    a(f's_add_u32 s5, s5, {stride * (25 if i == 7 else 1)}')
    def tag_ready(s):
        s.a(f's_waitcnt lgkmcnt(0)\ns_add_u32 s12, s12, {TAGK}')

    def front(s, kind):
        a = s.a
        q = kind == 'q'
        js = 63 if q else 69
        stride = 8192 if q else 3584
        s.srd(52, 0); s.srd(48, 2 if q else 7)
        a(f"""
        v_and_b32 v3, 3, v0
        v_lshlrev_b32 v3, 10, v3
        v_lshrrev_b32 v4, 2, v0
        v_lshl_add_u32 v3, v4, 6, v3""")
        for i in range(4):
            a(f'buffer_load_dwordx4 v[{16+4*i}:{19+4*i}], v3, s[52:55], 0 offen offset:{16*i}')
        a(f"""
        v_and_b32 v4, 3, v1
        v_lshlrev_b32 v4, 10, v4
        v_lshl_add_u32 v4, v2, 4, v4
        s_lshl_b32 s4, s{js}, 7""")
        for Gi in range(2):
            a(f'buffer_load_dwordx4 v[{32+4*Gi}:{35+4*Gi}], v4, s[52:55], s4 offen offset:{64*Gi}')
        a(f"""
        v_mul_u32_u24 v5, {8*stride}, v2
        v_lshl_add_u32 v5, v1, 4, v5
        s_mul_i32 s5, s{js}, {64*stride}
        s_lshl_b32 s6, s{62 if q else 68}, 8
        s_add_u32 s5, s5, s6""")
        s.wloads(40, stride, 48, s.ntw)
        if q:
            s.srd(56, 3)
            a(f"""
            v_lshrrev_b32 v6, 2, v1
            v_lshlrev_b32 v6, 4, v6
            v_and_b32 v7, 3, v1
            v_add_u32 v6, v6, v7
            v_lshlrev_b32 v6, 13, v6
            v_lshl_add_u32 v6, v2, 6, v6
            s_lshl_b32 s5, s63, 19
            s_lshl_b32 s6, s62, 8
            s_add_u32 s5, s5, s6""")
            for tt in range(4):
                for ks in range(4):
                    r = 168 + 16 * tt + 4 * ks
                    a(f'buffer_load_dwordx4 v[{r}:{r+3}], v6, s[56:59], s5 offen offset:{16*ks}{s.ntw}')
                if tt < 3: a(f's_add_u32 s5, s5, {4*8192}')
            extra = 16
        else:
            s.srd(56, 8)
            a(f"""
            v_lshrrev_b32 v6, 2, v1
            v_lshlrev_b32 v6, 4, v6
            v_lshl_add_u32 v6, v2, 6, v6
            s_lshl_b32 s5, s68, 8
            buffer_load_dwordx4 v[168:171], v6, s[56:59], s5 offen""")
            extra = 1
        a('s_barrier')
        s.tag_ready()
        s.stamp(1)
        s.settags(232, 6)
        a(f's_waitcnt vmcnt({2+16+extra})')
        a("""
        v_mov_b32 v8, 0
        v_mov_b32 v9, 0
        v_mov_b32 v10, 0
        v_mov_b32 v11, 0
        v_mov_b32 v12, 0x3f803f80""")
        for k in range(16):
            a(f'v_dot2c_f32_bf16 v{8+(k&1)}, v{16+k}, v12')
            a(f'v_dot2c_f32_bf16 v{10+(k&1)}, v{16+k}, v{16+k}')
        a(f"""
        v_add_f32 v8, v8, v9
        v_add_f32 v10, v10, v11
        v_add_f32_dpp v8, v8, v8 row_ror:4 row_mask:0xf bank_mask:0xf
        v_add_f32_dpp v10, v10, v10 row_ror:4 row_mask:0xf bank_mask:0xf
        v_add_f32_dpp v8, v8, v8 row_ror:8 row_mask:0xf bank_mask:0xf
        v_add_f32_dpp v10, v10, v10 row_ror:8 row_mask:0xf bank_mask:0xf
        v_permlane16_swap_b32 v8, v10
        v_add_f32 v8, v8, v10
        v_mov_b32 v9, v8
        v_permlane32_swap_b32 v8, v9
        v_add_f32 v8, v8, v9
        v_mov_b32 v9, v8
        v_permlane16_swap_b32 v8, v9
        v_mul_f32 v8, {f32(1/512)}, v8
        v_mul_f32 v9, {f32(1/512)}, v9
        v_fma_f32 v9, -v8, v8, v9
        v_max_f32 v9, 0, v9
        v_cvt_pk_bf16_f32 v10, v8, v9
        v_lshlrev_b32 v8, 16, v10
        v_and_b32 v9, 0xffff0000, v10
        v_add_f32 v9, {f32(1e-5)}, v9
        v_cvt_pk_bf16_f32 v9, v9, v9
        v_and_b32 v9, 0xffff0000, v9
        v_sqrt_f32 v9, v9
        v_cvt_pk_bf16_f32 v9, v9, v9
        v_and_b32 v9, 0xffff0000, v9
        v_rcp_f32 v9, v9
        s_waitcnt vmcnt({16+extra})""")
        for k in range(8):
            r = 32 + k
            a(f"""
            v_lshlrev_b32 v10, 16, v{r}
            v_and_b32 v11, 0xffff0000, v{r}
            v_sub_f32 v10, v10, v8
            v_sub_f32 v11, v11, v8
            v_cvt_pk_bf16_f32 v10, v10, v11
            v_and_b32 v11, 0xffff0000, v10
            v_lshlrev_b32 v10, 16, v10
            v_mul_f32 v10, v10, v9
            v_mul_f32 v11, v11, v9
            v_cvt_pk_bf16_f32 v{r}, v10, v11""")
        s.stamp(2)
        for Gi in range(2):
            a(f's_waitcnt vmcnt({8*(1-Gi)+extra})')
            s.perms8(40 + 32 * Gi, 104)
            for jj in range(8):
                c = '0' if Gi == 0 else f'v[{136+4*jj}:{139+4*jj}]'
                a(f'v_mfma_f32_16x16x32_bf16 v[{136+4*jj}:{139+4*jj}], v[{104+4*jj}:{107+4*jj}], v[{32+4*Gi}:{35+4*Gi}], {c}')
        if q:
            a(f's_lshl_b32 s6, s62, 3\ns_add_u32 s6, s6, s63\ns_mul_i32 s6, s6, 1536\ns_add_u32 s6, s6, {H1}')
        else:
            a(f's_lshl_b32 s6, s68, 3\ns_add_u32 s6, s6, s69\ns_mul_i32 s6, s6, 1536\ns_add_u32 s6, s6, {HM}')
        s.publish_h1(136, 232)
        s.stamp(3)
        s.gather8_voff(13)
        a('s_sleep 8')
        if q:
            s.gather8(40, 13, f's_mul_i32 s6, s62, 12288\ns_add_u32 s6, s6, {H1}')
            s.stamp(4)
            for sg in range(2):
                for ks in range(4):
                    for tt in range(4):
                        c = '0' if (sg == 0 and ks == 0) else f'v[{104+4*tt}:{107+4*tt}]'
                        u = 168 + 16 * tt + 4 * ks; b = 40 + 24 * sg + 4 * ks
                        a(f'v_mfma_f32_16x16x32_bf16 v[{104+4*tt}:{107+4*tt}], v[{u}:{u+3}], v[{b}:{b+3}], {c}')
            for k in range(16): a(f'v_add_f32_dpp v{104+k}, v{104+k}, v{104+k} row_ror:4 row_mask:0xf bank_mask:0xf')
            for k in range(16): a(f'v_add_f32_dpp v{104+k}, v{104+k}, v{104+k} row_ror:8 row_mask:0xf bank_mask:0xf')
            s.pack192(104, 232)
            a(f"""
            v_mul_u32_u24 v14, 49152, v1
            v_lshl_add_u32 v14, v2, 4, v14
            s_lshl_b32 s6, s62, 3
            s_add_u32 s6, s6, s63
            s_mul_i32 s6, s6, 192
            s_add_u32 s6, s6, {H2}
            s_mov_b64 exec, s[8:9]""")
            for i in range(3):
                a(f'buffer_store_dwordx4 v[{232+4*i}:{235+4*i}], v14, s[44:47], s6 offen offset:{64*i} sc1')
            a('s_mov_b64 exec, -1')
            s.stamp(5)
        else:
            s.gather8(40, 13, f's_mul_i32 s6, s68, 12288\ns_add_u32 s6, s6, {HM}')
            s.stamp(4)
            a('v_mov_b32 v10, 0x00003f80\nv_mov_b32 v11, 0x3f800000')
            for sg in range(2):
                for ks in range(4):
                    for t in range(4):
                        for hf in range(2):
                            d = 104 + 8 * ks + 2 * t + hf
                            src = 40 + 24 * sg + 4 * ks + t
                            a(f'v_dot2_f32_bf16 v{d}, v{src}, v{10+hf}, ' + ('0' if sg == 0 else f'v{d}'))
            for k in range(16):
                a(f'v_add_f32_dpp v{136+k}, v{104+k}, v{104+k} row_shl:8 row_mask:0xf bank_mask:0x3')
                a(f'v_add_f32_dpp v{136+k}, v{120+k}, v{120+k} row_shr:8 row_mask:0xf bank_mask:0xc')
            for k in range(8):
                a(f'v_add_f32_dpp v{104+k}, v{136+k}, v{136+k} row_shl:4 row_mask:0xf bank_mask:0x5')
                a(f'v_add_f32_dpp v{104+k}, v{144+k}, v{144+k} row_shr:4 row_mask:0xf bank_mask:0xa')
            c0 = -2 * 1.4426950408889634 * (2 / 3.141592653589793) ** 0.5
            a(f's_mov_b32 s4, {f32(c0*0.044715)}\nv_mov_b32 v12, {f32(c0)}')
            for t in range(4):
                a(f'v_lshlrev_b32 v{112+2*t}, 16, v{168+t}\nv_and_b32 v{113+2*t}, 0xffff0000, v{168+t}')
            for k in range(8): a(f'v_add_f32 v{104+k}, v{104+k}, v{112+k}')
            for k in range(8): a(f'v_mul_f32 v{112+k}, v{104+k}, v{104+k}')
            for k in range(8): a(f'v_fma_f32 v{112+k}, v{112+k}, s4, v12')
            for k in range(8): a(f'v_mul_f32 v{112+k}, v{112+k}, v{104+k}')
            for k in range(8): a(f'v_exp_f32 v{112+k}, v{112+k}')
            for k in range(8): a(f'v_add_f32 v{112+k}, 1.0, v{112+k}')
            for k in range(8): a(f'v_rcp_f32 v{112+k}, v{112+k}')
            for k in range(8): a(f'v_mul_f32 v{104+k}, v{104+k}, v{112+k}')
            for t in range(4): a(f'v_cvt_pk_bf16_f32 v{188+t}, v{104+2*t}, v{105+2*t}')
            s.stamp(5)
    def pack192(s, vd, vs):
        pos = {0: 0, 1: 1, 2: 2, 4: 4, 5: 5, 6: 6, 3: 8, 7: 9}
        for u in range(8):
            s.a(f'v_cvt_pk_bf16_f32 v{vs+pos[u]}, v{vd+2*u}, v{vd+2*u+1}')
    def epi5(s, vd, vs):
        a = s.a
        for r in range(4):
            a(f'v_permlane32_swap_b32 v{vd+r}, v{vd+8+r}')
            a(f'v_permlane32_swap_b32 v{vd+4+r}, v{vd+12+r}')
        for r in range(4):
            a(f'v_add_f32 v{vd+r}, v{vd+r}, v{vd+8+r}')
            a(f'v_add_f32 v{vd+4+r}, v{vd+4+r}, v{vd+12+r}')
        for r in range(4): a(f'v_permlane16_swap_b32 v{vd+r}, v{vd+4+r}')
        for r in range(4): a(f'v_add_f32 v{vd+r}, v{vd+r}, v{vd+4+r}')
        a(f"""
        v_cvt_pk_bf16_f32 v{vs}, v{vd}, v{vd+1}
        v_cvt_pk_bf16_f32 v{vs+1}, v{vd+2}, v{vd+3}
        v_mov_b32 v{vs+3}, s12
        v_lshlrev_b32 v14, 6, v1
        v_lshl_add_u32 v14, v2, 4, v14
        buffer_store_dwordx4 v[{vs}:{vs+3}], v14, s[44:47], s6 offen sc1""")
    def w5loads(s, slot, base_expr):
        a = s.a
        s.srd(48, slot)
        a(base_expr)
        a('v_lshlrev_b32 v5, 15, v2\nv_lshl_add_u32 v5, v1, 3, v5')
        for ks in range(4):
            for e in range(8):
                r = 192 + 16 * ks + 2 * e
                o = (e & 3) * 1024
                a(f'buffer_load_dwordx2 v[{r}:{r+1}], v5, s[48:51], s5 offen offset:{o}{s.ntw}')
                if e & 3 == 3 and not (ks == 3 and e == 7): a('s_add_u32 s5, s5, 4096')

    def build(s):
        a = s.a
        if s.stamps:
            for k in range(14): a(f's_mov_b64 s[{72+2*k}:{73+2*k}], 0')
            a('s_memrealtime s[72:73]')
        a(f"""
        s_cmp_ge_u32 s2, 256
        s_cbranch_scc1 L_exit
        s_load_dwordx16 s[16:31], s[0:1], 0
        s_load_dwordx8 s[32:39], s[0:1], 64
        s_load_dwordx4 s[40:43], s[0:1], 96
        v_lshrrev_b32 v1, 6, v0
        v_and_b32 v0, 63, v0
        v_readfirstlane_b32 s3, v1
        s_and_b32 s60, s2, 7
        s_lshr_b32 s61, s2, 3
        s_lshl_b32 s62, s60, 2
        s_and_b32 s4, s61, 3
        s_add_u32 s62, s62, s4
        s_lshr_b32 s63, s61, 2
        s_lshr_b32 s64, s60, 1
        s_lshr_b32 s67, s61, 1
        s_and_b32 s65, s60, 1
        s_lshl_b32 s65, s65, 4
        s_add_u32 s65, s65, s67
        s_and_b32 s66, s61, 1
        s_lshr_b32 s4, s61, 3
        s_lshl_b32 s4, s4, 3
        s_add_u32 s68, s60, s4
        s_and_b32 s69, s61, 7
        s_cmp_lt_u32 s68, 14
        s_cselect_b32 s70, 1, 0
        s_mov_b32 s10, 0x05040100
        s_mov_b32 s11, 0x07060302
        v_and_b32 v1, 15, v0
        v_lshrrev_b32 v2, 4, v0
        s_waitcnt lgkmcnt(0)
        s_load_dword s12, s[42:43], 0
        s_mov_b32 s44, s42
        s_and_b32 s45, s43, 0xffff
        s_mov_b32 s46, 0x10000000
        s_mov_b32 s47, 0x20000
        s_cmp_ge_u32 s3, 4
        s_cbranch_scc1 L_loader
        s_cmp_eq_u32 s3, 0
        s_cbranch_scc1 L_w0
        s_cmp_eq_u32 s3, 1
        s_cselect_b32 s4, s70, 0
        s_cmp_eq_u32 s4, 1
        s_cbranch_scc1 L_w1
        s_barrier""")
        s.tag_ready()
        a('s_branch L_b05')
        a('L_w0:')
        s.front('q')
        a('s_branch L_b05')
        a('L_w1:')
        s.front('mlp')
        a('L_b05:')
        a('s_barrier')
        s.stamp(6)
        a("""
        s_cmp_eq_u32 s3, 2
        s_cbranch_scc1 L_c2
        s_cmp_eq_u32 s3, 3
        s_cbranch_scc1 L_c3
        s_cmp_eq_u32 s3, 1
        s_cselect_b32 s4, s70, 0
        s_cmp_eq_u32 s4, 1
        s_cbranch_scc0 L_att""")
        s.w5loads(9, 's_lshl_b32 s5, s68, 17\ns_lshl_b32 s4, s69, 7\ns_add_u32 s5, s5, s4')
        a('s_branch L_att\nL_c3:')
        s.w5loads(5, 's_lshl_b32 s5, s62, 17\ns_lshl_b32 s4, s63, 7\ns_add_u32 s5, s5, s4')
        a('s_branch L_att\nL_c2:')
        s.srd(48, 4)
        a("""
        v_lshlrev_b32 v5, 16, v2
        v_lshl_add_u32 v5, v1, 4, v5
        s_lshl_b32 s5, s63, 19
        s_lshl_b32 s6, s62, 8
        s_add_u32 s5, s5, s6""")
        s.wloads(192, 8192, 48, s.ntw)
        a('s_branch L_att')
        a('L_loader:')
        s.srd(48, 1)
        a('v_lshlrev_b32 v3, 4, v0')
        for k in range(8): a(f'v_xor_b32 v{16+k}, {32*k}, v3')
        a(f"""
        s_sub_u32 s14, s3, 4
        s_lshl_b32 s4, s64, 5
        s_add_u32 s4, s4, s65
        s_lshl_b32 s4, s4, 17
        s_lshl_b32 s5, s14, 15
        s_add_u32 s4, s4, s5
        s_mov_b32 m0, s5
        v_lshrrev_b32 v13, 2, v0
        v_mul_u32_u24 v13, 192, v13
        v_and_b32 v14, 3, v0
        v_lshl_add_u32 v13, v14, 4, v13
        s_lshl_b32 s6, s64, 1
        s_add_u32 s6, s6, s66
        s_mul_i32 s6, s6, 24576
        s_mul_i32 s7, s14, 6144
        s_add_u32 s6, s6, s7
        s_add_u32 s6, s6, {H2}
        s_add_u32 s7, s6, 3072
        v_lshrrev_b32 v8, 5, v0
        s_lshl_b32 s15, s14, 2
        v_add_u32 v8, s15, v8
        v_bfe_u32 v9, v0, 2, 3
        v_lshlrev_b32 v9, 3, v9
        v_lshl_add_u32 v9, v14, 1, v9
        v_and_b32 v10, 7, v8
        v_lshlrev_b32 v10, 1, v10
        v_xor_b32 v10, v10, v9
        v_lshlrev_b32 v10, 4, v10
        v_lshl_add_u32 v10, v8, 10, v10
        v_add_u32 v10, {QA}, v10
        v_add_u32 v8, 2, v8
        v_and_b32 v11, 7, v8
        v_lshlrev_b32 v11, 1, v11
        v_xor_b32 v11, v11, v9
        v_lshlrev_b32 v11, 4, v11
        v_lshl_add_u32 v11, v8, 10, v11
        v_add_u32 v11, {QA}, v11
        s_barrier""")
        s.tag_ready()
        s.stamp(1)
        for i in range(32):
            a(f'buffer_load_dwordx4 v{16+(i&7)}, s[48:51], s4 offen{s.ntkv} lds')
            if i < 31: a('s_add_u32 s4, s4, 1024\ns_add_u32 m0, m0, 1024')
            if s.thr is not None and i >= s.thr and i < 31: a(f's_waitcnt vmcnt({s.thr})')
        s.stamp(2)
        h2loads = []
        for q in range(2):
            for i in range(3):
                r = 192 + 12 * q + 4 * i
                h2loads.append(f'buffer_load_dwordx4 v[{r}:{r+3}], v13, s[44:47], s{6+q} offen offset:{64*i} sc1')
        for l in h2loads: a(l)
        a('s_waitcnt vmcnt(6)')
        s.stamp(3)
        a('s_barrier')
        s.stamp(6)
        a('L_att:')
        a(f"""
        v_and_b32 v3, 7, v1
        v_lshlrev_b32 v3, 1, v3
        s_lshl_b32 s4, s3, 14
        v_lshlrev_b32 v4, 10, v1""")
        for k in range(4):
            a(f"""
            v_add_u32 v5, {4*k}, v2
            v_xor_b32 v5, v5, v3
            v_lshl_add_u32 v5, v5, 4, v4
            v_add_u32 v{180+k}, s4, v5
            v_add_u32 v{184+k}, {QA}, v5""")
        for ks in range(16):
            a(f'ds_read_b128 v[{16+4*ks}:{19+4*ks}], v{180+(ks&3)} offset:{256*(ks>>2)}')
        a(f"""
        v_lshrrev_b32 v3, 2, v1
        v_lshl_add_u32 v3, v2, 2, v3
        v_and_b32 v4, 7, v3
        v_lshlrev_b32 v4, 1, v4
        v_lshlrev_b32 v3, 10, v3
        v_and_b32 v5, 1, v1
        v_lshl_add_u32 v3, v5, 3, v3
        v_bfe_u32 v5, v1, 1, 1
        s_and_b32 s4, s3, 1
        s_lshl_b32 s4, s4, 3
        v_add_u32 v5, s4, v5
        s_lshr_b32 s4, s3, 1
        s_lshl_b32 s4, s4, 8
        v_add_u32 v3, s4, v3""")
        for tt in range(4):
            a(f"""
            v_add_u32 v6, {2*tt}, v5
            v_xor_b32 v6, v6, v4
            v_lshl_add_u32 v{216+tt}, v6, 4, v3""" if False else f"""
            v_add_u32 v6, {2*tt}, v5
            v_xor_b32 v6, v6, v4
            v_lshl_add_u32 v{172+tt}, v6, 4, v3""")
        a("""
        s_cmp_lt_u32 s3, 4
        s_cbranch_scc1 L_b1""")
        tags = [192 + 4 * k + 3 for k in range(6)]
        s.poll(h2loads, tags, 14, first_issued=True)
        for q in range(2):
            b = 192 + 12 * q
            a(f'v_mov_b32 v{b+3}, v{b+8}\nv_mov_b32 v{b+7}, v{b+9}')
            a(f'ds_write_b128 v{10+q}, v[{b}:{b+3}]\nds_write_b128 v{10+q}, v[{b+4}:{b+7}] offset:16')
        a('L_b1:')
        a('s_waitcnt lgkmcnt(0)')
        s.stamp(7)
        a('s_barrier')
        for ks in range(16):
            a(f'ds_read_b128 v[{80+4*ks}:{83+4*ks}], v{184+(ks&3)} offset:{256*(ks>>2)}')
        for ks in range(16):
            a(f's_waitcnt lgkmcnt({15-ks})')
            acc = 176 if ks & 1 == 0 else 144
            c = '0' if ks < 2 else f'v[{acc}:{acc+3}]'
            a(f'v_mfma_f32_16x16x32_bf16 v[{acc}:{acc+3}], v[{16+4*ks}:{19+4*ks}], v[{80+4*ks}:{83+4*ks}], {c}')
        for tt in range(4): a(f'v_add_u32 v{148+tt}, 0x10000, v{172+tt}')
        for r in range(4): a(f'v_add_f32 v{176+r}, v{176+r}, v{144+r}')
        a(f"""
        v_max3_f32 v3, v176, v177, v178
        v_max_f32 v3, v3, v179
        v_mov_b32 v4, v3
        v_permlane16_swap_b32 v3, v4
        v_max_f32 v3, v3, v4
        v_mov_b32 v4, v3
        v_permlane32_swap_b32 v3, v4
        v_max_f32 v3, v3, v4
        v_lshlrev_b32 v6, 5, v1
        s_lshl_b32 s4, s3, 2
        s_add_u32 s4, s4, {ST}
        v_add_u32 v5, s4, v6
        v_add_u32 v6, {ST}, v6
        ds_write_b32 v5, v3
        s_waitcnt lgkmcnt(0)""")
        s.stamp(8)
        a('s_barrier')
        a('ds_read_b128 v[80:83], v6\nds_read_b128 v[84:87], v6 offset:16')
        for ks in range(4):
            for tt in range(4):
                for t in range(2):
                    T = 2 * ks + t
                    ar = (172 if T < 4 else 148) + tt
                    d = 16 + 16 * tt + 4 * ks + 2 * t
                    a(f'ds_read_b64_tr_b16 v[{d}:{d+1}], v{ar} offset:{(T&3)*16384}')
            if ks == 0:
                a(f"""
                s_waitcnt lgkmcnt(8)
                v_max3_f32 v3, v80, v81, v82
                v_max3_f32 v4, v83, v84, v85
                v_max3_f32 v3, v3, v86, v87
                v_max_f32 v3, v3, v4
                s_mov_b32 s4, {f32(SC)}
                v_mul_f32 v7, s4, v3""")
                for r in range(4): a(f'v_fma_f32 v{176+r}, v{176+r}, s4, -v7')
                for r in range(4): a(f'v_exp_f32 v{176+r}, v{176+r}')
                a(f"""
                v_cvt_pk_bf16_f32 v8, v176, v177
                v_cvt_pk_bf16_f32 v9, v178, v179
                v_add_f32 v3, v176, v177
                v_add_f32 v4, v178, v179
                v_add_f32 v3, v3, v4
                v_mov_b32 v4, v3
                v_permlane16_swap_b32 v3, v4
                v_add_f32 v3, v3, v4
                v_mov_b32 v4, v3
                v_permlane32_swap_b32 v3, v4
                v_add_f32 v3, v3, v4
                s_lshr_b32 s4, s3, 1
                s_lshl_b32 s4, s4, 10
                s_and_b32 s5, s3, 1
                s_lshl_b32 s5, s5, 3
                s_add_u32 s4, s4, s5
                s_add_u32 s4, s4, {PB}
                v_lshlrev_b32 v12, 4, v0
                v_add_u32 v4, s4, v12
                v_add_u32 v12, {PB}, v12
                ds_write_b64 v4, v[8:9]
                ds_write_b32 v5, v3 offset:{SL-ST}""")
        a('s_waitcnt lgkmcnt(0)')
        s.stamp(9)
        a('s_barrier')
        for ks in range(4): a(f'ds_read_b128 v[{80+4*ks}:{83+4*ks}], v12 offset:{1024*ks}')
        a(f'ds_read_b128 v[96:99], v6 offset:{SL-ST}\nds_read_b128 v[100:103], v6 offset:{SL-ST+16}')
        for ks in range(4):
            a(f's_waitcnt lgkmcnt({5-ks})')
            for tt in range(4):
                c = '0' if ks == 0 else f'v[{104+4*tt}:{107+4*tt}]'
                f = 16 + 16 * tt + 4 * ks
                a(f'v_mfma_f32_16x16x32_bf16 v[{104+4*tt}:{107+4*tt}], v[{f}:{f+3}], v[{80+4*ks}:{83+4*ks}], {c}')
        a(f"""
        s_waitcnt lgkmcnt(0)
        v_add_f32 v96, v96, v97
        v_add_f32 v98, v98, v99
        v_add_f32 v100, v100, v101
        v_add_f32 v102, v102, v103
        v_add_f32 v96, v96, v98
        v_add_f32 v100, v100, v102
        v_add_f32 v96, v96, v100
        v_rcp_f32 v97, v96
        v_log_f32 v98, v96
        v_mov_b32 v123, s12
        v_mov_b32 v127, s12
        v_mov_b32 v131, s12
        v_add_f32 v130, v98, v7
        s_lshl_b32 s4, s66, 4
        v_add_u32 v14, s4, v1
        s_mov_b32 s4, {8*24576}
        v_mul_lo_u32 v14, v14, s4
        v_lshl_add_u32 v14, v2, 4, v14
        s_mul_i32 s6, s3, 24576
        s_lshl_b32 s4, s64, 5
        s_add_u32 s4, s4, s65
        s_mul_i32 s4, s4, 192
        s_add_u32 s6, s6, s4
        s_add_u32 s6, s6, {H3}""")
        for k in range(16): a(f'v_mul_f32 v{104+k}, v{104+k}, v97')
        s.pack192(104, 120)
        for i in range(3):
            a(f'buffer_store_dwordx4 v[{120+4*i}:{123+4*i}], v14, s[44:47], s6 offen offset:{64*i} sc1')
        s.stamp(10)
        a("""
        s_cmp_ge_u32 s3, 4
        s_cbranch_scc1 L_comb
        s_cmp_eq_u32 s3, 2
        s_cbranch_scc1 L_t2
        s_cmp_eq_u32 s3, 3
        s_cbranch_scc1 L_t3
        s_cmp_eq_u32 s3, 0
        s_cbranch_scc1 L_t0
        s_cmp_eq_u32 s70, 1
        s_cbranch_scc0 L_t1end""")
        a('s_waitcnt vmcnt(3)')
        for ks in range(4): s.perms4(192 + 16 * ks, 16 + 16 * ks)
        a('v_lshrrev_b32 v3, 2, v1')
        for ks in range(4):
            a(f'v_cmp_eq_u32 vcc, {ks}, v3')
            for t in range(4): a(f'v_cndmask_b32 v{80+4*ks+t}, 0, v{188+t}, vcc')
        for ks in range(4):
            for jj in range(4):
                c = '0' if ks == 0 else f'v[{128+4*jj}:{131+4*jj}]'
                w = 16 + 16 * ks + 4 * jj
                a(f'v_mfma_f32_16x16x32_bf16 v[{128+4*jj}:{131+4*jj}], v[{80+4*ks}:{83+4*ks}], v[{w}:{w+3}], {c}')
        a(f's_add_u32 s6, s68, 32\ns_lshl_b32 s6, s6, 13\ns_lshl_b32 s4, s69, 10\ns_add_u32 s6, s6, s4\ns_add_u32 s6, s6, {H4}')
        s.epi5(128, 144)
        s.stamp(11)
        a('L_t1end:\ns_barrier')
        s.end()
        a('L_comb:')
        a(f"""
        s_lshl_b32 s6, s62, 3
        s_add_u32 s6, s6, s63
        s_mul_i32 s6, s6, 24576
        s_mul_i32 s7, s14, 6144
        s_add_u32 s6, s6, s7
        s_add_u32 s6, s6, {H3}
        s_add_u32 s7, s6, 3072
        s_sleep 32""")
        loads = []
        for q in range(2):
            for i in range(3):
                r = 80 + 12 * q + 4 * i
                loads.append(f'buffer_load_dwordx4 v[{r}:{r+3}], v13, s[44:47], s{6+q} offen offset:{64*i} sc1')
        s.poll(loads, [80 + 4 * k + 3 for k in range(6)], 14)
        s.stamp(11)
        a("""
        v_max_f32 v3, v90, v102
        v_max_f32_dpp v3, v3, v3 row_ror:4 row_mask:0xf bank_mask:0xf
        v_max_f32_dpp v3, v3, v3 row_ror:8 row_mask:0xf bank_mask:0xf
        v_mov_b32 v4, v3
        v_permlane16_swap_b32 v3, v4
        v_max_f32 v3, v3, v4
        v_mov_b32 v4, v3
        v_permlane32_swap_b32 v3, v4
        v_max_f32 v3, v3, v4
        v_sub_f32 v5, v90, v3
        v_sub_f32 v6, v102, v3
        v_exp_f32 v5, v5
        v_exp_f32 v6, v6
        v_add_f32 v3, v5, v6
        v_add_f32_dpp v3, v3, v3 row_ror:4 row_mask:0xf bank_mask:0xf
        v_add_f32_dpp v3, v3, v3 row_ror:8 row_mask:0xf bank_mask:0xf
        v_mov_b32 v4, v3
        v_permlane16_swap_b32 v3, v4
        v_add_f32 v3, v3, v4
        v_mov_b32 v4, v3
        v_permlane32_swap_b32 v3, v4
        v_add_f32 v3, v3, v4
        v_rcp_f32 v7, v3""")
        pos = {0: 0, 1: 1, 2: 2, 4: 4, 5: 5, 6: 6, 3: 8, 7: 9}
        for u in range(8):
            pa = 80 + pos[u]; pb = 92 + pos[u]
            a(f"""
            v_lshlrev_b32 v{16+2*u}, 16, v{pa}
            v_and_b32 v{17+2*u}, 0xffff0000, v{pa}
            v_lshlrev_b32 v{32+2*u}, 16, v{pb}
            v_and_b32 v{33+2*u}, 0xffff0000, v{pb}""")
        for k in range(16): a(f'v_mul_f32 v{16+k}, v{16+k}, v5')
        for k in range(16): a(f'v_fmac_f32 v{16+k}, v{32+k}, v6')
        for k in range(8): a(f'v_permlane32_swap_b32 v{16+k}, v{24+k}')
        for k in range(8): a(f'v_add_f32 v{16+k}, v{16+k}, v{24+k}')
        for k in range(4): a(f'v_permlane16_swap_b32 v{16+k}, v{20+k}')
        for k in range(4): a(f'v_add_f32 v{16+k}, v{16+k}, v{20+k}')
        for k in range(2):
            a(f'v_add_f32_dpp v{24+k}, v{16+k}, v{16+k} row_shl:8 row_mask:0xf bank_mask:0x3')
            a(f'v_add_f32_dpp v{24+k}, v{18+k}, v{18+k} row_shr:8 row_mask:0xf bank_mask:0xc')
        a(f"""
        v_add_f32_dpp v16, v24, v24 row_shl:4 row_mask:0xf bank_mask:0x5
        v_add_f32_dpp v16, v25, v25 row_shr:4 row_mask:0xf bank_mask:0xa
        v_mul_f32 v16, v16, v7
        v_cvt_pk_bf16_f32 v16, v16, v16
        v_lshlrev_b32 v8, 5, v2
        v_and_b32 v9, 3, v0
        v_lshl_add_u32 v8, v9, 3, v8
        v_bfe_u32 v9, v0, 2, 2
        v_lshl_add_u32 v8, v9, 1, v8
        s_lshl_b32 s4, s14, 7
        s_add_u32 s4, s4, {CT}
        v_add_u32 v8, s4, v8
        ds_write_b16 v8, v16
        s_waitcnt lgkmcnt(0)""")
        s.stamp(12)
        a('s_barrier')
        s.end()
        a('L_t2:')
        a('s_waitcnt vmcnt(3)')
        for Gi in range(2): s.perms8(192 + 32 * Gi, 16 + 32 * Gi)
        s.settags(232, 6)
        a(f"""
        v_and_b32 v3, 3, v1
        v_lshlrev_b32 v3, 7, v3
        v_lshl_add_u32 v3, v2, 4, v3
        v_add_u32 v3, {CT}, v3
        s_lshl_b32 s6, s62, 3
        s_add_u32 s6, s6, s63
        s_mul_i32 s6, s6, 1536
        s_add_u32 s6, s6, {H35}""")
        s.stamp(11)
        a("""
        s_barrier
        ds_read_b128 v[80:83], v3
        ds_read_b128 v[84:87], v3 offset:64""")
        for Gi in range(2):
            a(f's_waitcnt lgkmcnt({1-Gi})')
            for jj in range(8):
                c = '0' if Gi == 0 else f'v[{136+4*jj}:{139+4*jj}]'
                w = 16 + 32 * Gi + 4 * jj
                a(f'v_mfma_f32_16x16x32_bf16 v[{136+4*jj}:{139+4*jj}], v[{w}:{w+3}], v[{80+4*Gi}:{83+4*Gi}], {c}')
        s.publish_h1(136, 232)
        s.stamp(12)
        s.end()
        a('L_t3:')
        a('s_waitcnt vmcnt(3)')
        for ks in range(4): s.perms4(192 + 16 * ks, 16 + 16 * ks)
        s.gather8_voff(13)
        s.stamp(11)
        a('s_barrier\ns_sleep 12')
        s.gather8(80, 13, f's_mul_i32 s6, s62, 12288\ns_add_u32 s6, s6, {H35}')
        s.stamp(12)
        for sg in range(2):
            for ks in range(4):
                for jj in range(4):
                    c = '0' if (sg == 0 and ks == 0) else f'v[{128+4*jj}:{131+4*jj}]'
                    w = 16 + 16 * ks + 4 * jj; f = 80 + 24 * sg + 4 * ks
                    a(f'v_mfma_f32_16x16x32_bf16 v[{128+4*jj}:{131+4*jj}], v[{f}:{f+3}], v[{w}:{w+3}], {c}')
        a(f's_lshl_b32 s6, s62, 13\ns_lshl_b32 s4, s63, 10\ns_add_u32 s6, s6, s4\ns_add_u32 s6, s6, {H4}')
        s.epi5(128, 144)
        s.end()
        a('L_t0:')
        s.srd(48, 0); s.srd(52, 10); s.srd(56, 11)
        a(f"""
        s_lshl_b32 s5, s60, 5
        s_add_u32 s5, s5, s61
        s_lshl_b32 s4, s5, 2
        v_and_b32 v3, 1, v0
        v_lshlrev_b32 v4, 1, v3
        v_lshl_add_u32 v5, v2, 10, v4
        buffer_load_ushort v20, v5, s[48:51], s4 offen
        buffer_load_ushort v21, v4, s[52:55], s4 offen
        v_lshrrev_b32 v13, 1, v0
        v_lshlrev_b32 v13, 13, v13
        v_lshl_add_u32 v13, v3, 4, v13
        s_lshl_b32 s6, s5, 5
        s_add_u32 s6, s6, {H4}
        s_add_u32 s7, s6, {32*8192}
        v_mov_b32 v16, 0
        v_mov_b32 v17, 0
        v_mov_b32 v19, s12
        s_barrier
        s_mov_b64 exec, 0xfffffff""")
        def red(base):
            a(f"""
            v_lshlrev_b32 v24, 16, v{base}
            v_and_b32 v25, 0xffff0000, v{base}
            v_lshlrev_b32 v26, 16, v{base+1}
            v_and_b32 v27, 0xffff0000, v{base+1}
            v_permlane32_swap_b32 v24, v26
            v_permlane32_swap_b32 v25, v27
            v_add_f32 v24, v24, v26
            v_add_f32 v25, v25, v27
            v_permlane16_swap_b32 v24, v25
            v_add_f32 v24, v24, v25
            v_add_f32_dpp v24, v24, v24 row_ror:8 row_mask:0xf bank_mask:0xf
            v_add_f32_dpp v24, v24, v24 row_ror:4 row_mask:0xf bank_mask:0xf
            v_add_f32_dpp v24, v24, v24 quad_perm:[2,3,0,1] row_mask:0xf bank_mask:0xf""")
        s.poll(['buffer_load_dwordx4 v[16:19], v13, s[44:47], s7 offen sc1'], [19], 14)
        a('s_mov_b64 exec, -1')
        red(16)
        a(f"""
        v_lshlrev_b32 v21, 16, v21
        v_lshlrev_b32 v20, 16, v20
        v_add_f32 v22, v24, v21
        v_mul_f32 v23, {f32(-1.4426950408889634)}, v22
        v_exp_f32 v23, v23
        v_add_f32 v23, 1.0, v23
        v_rcp_f32 v23, v23
        v_mul_f32 v22, v22, v23""")
        s.stamp(11)
        s.poll(['buffer_load_dwordx4 v[28:31], v13, s[44:47], s6 offen sc1'], [31], 14)
        s.stamp(12)
        red(28)
        a(f"""
        v_fma_f32 v24, v24, v22, v20
        v_mov_b32_dpp v25, v24 quad_perm:[1,0,3,2] row_mask:0xf bank_mask:0xf
        v_cvt_pk_bf16_f32 v24, v24, v25
        v_lshlrev_b32 v5, 10, v2
        s_mov_b32 s8, 0x00010001
        s_mov_b32 s9, 0x00010001
        s_mov_b64 exec, s[8:9]
        buffer_store_dword v24, v5, s[56:59], s4 offen
        s_cmp_lg_u32 s2, 0
        s_cbranch_scc1 L_fin
        s_mov_b64 exec, 1
        v_mov_b32 v5, 0
        v_mov_b32 v6, s12
        buffer_store_dword v6, v5, s[44:47], 0 offen
        L_fin:""")
        s.end()
        a('L_exit:\ns_endpgm')
        body = a.finish()
        return file_text([(None, 256, 512, LDS)], [kernel_text(KN + '_kernel', body, 256)])

if __name__ == '__main__':
    open('p16.s', 'w').write(G().build())
    open('p16_st.s', 'w').write(G(stamps=True).build())
```
